```python
import torch

def _softmax(x, axis=-1):
    return torch.softmax(x, dim=axis)
def _gelu(x):
    return torch.nn.functional.gelu(x, approximate="tanh")
def _silu(x):
    return torch.nn.functional.silu(x)
def _sigmoid(x):
    return torch.sigmoid(x)
def _layernorm(x, axis=-1, eps=1e-5):
    m = x.mean(dim=axis, keepdim=True)
    v = x.var(dim=axis, keepdim=True, unbiased=False)
    return (x - m) / torch.sqrt(v + eps)
def _scatter_add(tgt, idx, src, axis=0):
    return tgt.clone().index_add_(axis, idx, src)
def _segment_sum(src, seg, n):
    out = torch.zeros((n,) + src.shape[1:], dtype=src.dtype)
    return out.index_add_(0, seg, src)
def _pad(x, pw):
    flat = tuple(v for pair in reversed(pw) for v in pair)
    return torch.nn.functional.pad(x, flat)

kernel_name = 'gated_mix__mha_block__mixer_s_mlp__prompt'

def setup_inputs():

    _w = (lambda a: (lambda t: t.to(torch.bfloat16) if t.is_floating_point() else t)(torch.as_tensor(a)))
    def _A_setup():
        B, S, D, H = 1, 2048, 448, 16
        return {
            "x": _w((lambda *s: torch.randn(*s, dtype=torch.bfloat16) * 0.1)(B, S, D)),
            "wqkv": _w((lambda *s: torch.randn(*s, dtype=torch.bfloat16) * 0.8)(D, 3 * D)),
            "wo": _w((lambda *s: torch.randn(*s, dtype=torch.bfloat16) * 0.4)(D, D)),
        }
    _A_in = _A_setup()

    def _B_setup():
        B, S, D, F = 1, 2048, 448, 1792
        return {
            "x":  _w((lambda *s: torch.randn(*s, dtype=torch.bfloat16) * 0.1)(B, S, D)),
            "w1": _w((lambda *s: torch.randn(*s, dtype=torch.bfloat16) * 3.2)(D, D) * (D ** -0.5)),
            "w2": _w((lambda *s: torch.randn(*s, dtype=torch.bfloat16) * 3.2)(D, D) * (D ** -0.5)),
            "w3": _w((lambda *s: torch.randn(*s, dtype=torch.bfloat16) * 3.2)(D, F) * (D ** -0.5)),
            "w4": _w((lambda *s: torch.randn(*s, dtype=torch.bfloat16) * 3.2)(F, D) * (F ** -0.5)),
        }
    _B_in = _B_setup()

    return {
        "A_x": _A_in["x"],
        "A_wqkv": _A_in["wqkv"],
        "A_wo": _A_in["wo"],
        "B_x": _B_in["x"],
        "B_w1": _B_in["w1"],
        "B_w2": _B_in["w2"],
        "B_w3": _B_in["w3"],
        "B_w4": _B_in["w4"],
        "gate_w": _w((lambda *s: torch.randn(*s, dtype=torch.bfloat16) * 0.1)(448) * 16.0),
    }

def reference(A_x, A_wqkv, A_wo, B_x, B_w1, B_w2, B_w3, B_w4, gate_w):
    def _A_ref(x, wqkv, wo):
        B, S, D = x.shape
        H = 16
        Dh = D // H
        qkv = (lambda x, *d: x.permute(*d))((x @ wqkv).reshape(B, S, 3, H, Dh), 2, 0, 3, 1, 4)
        q, k, v = qkv[0], qkv[1], qkv[2]
        scores = torch.einsum("bhqd,bhkd->bhqk", q, k) * (Dh ** -0.5)
        p = _softmax(scores, axis=-1)
        o = torch.einsum("bhqk,bhkd->bhqd", p, v)
        return (lambda x, *d: x.permute(*d))(o, 0, 2, 1, 3).reshape(B, S, D) @ wo

    def _B_ref(x, w1, w2, w3, w4):
        B, S, D = x.shape
        h = _gelu(_layernorm(x, axis=-1) @ w1)
        c = D // 4
        g0 = _pad(h[:, :, 0*c:1*c], ((0, 0), (1, 0), (0, 0)))[:, :S, :]
        g1 = _pad(h[:, :, 1*c:2*c], ((0, 0), (0, 1), (0, 0)))[:, 1:, :]
        g2 = _pad(h[:, :, 2*c:3*c], ((0, 0), (2, 0), (0, 0)))[:, :S, :]
        g3 = _pad(h[:, :, 3*c:   ], ((0, 0), (0, 2), (0, 0)))[:, 2:, :]
        hs = torch.concatenate([g0, g1, g2, g3], axis=-1) @ w2
        x1 = x + hs
        h2 = _gelu(_layernorm(x1, axis=-1) @ w3) @ w4
        return x1 + h2

    x = A_x
    g = _sigmoid((x * gate_w).sum(-1, keepdims=True))
    a = _A_ref(x, A_wqkv, A_wo)
    b = _B_ref(x, B_w1, B_w2, B_w3, B_w4)
    return g * a + (1 - g) * b
```

```python
import math, struct, re

S = 2048; D = 448; H = 16; DH = 28; F = 1792
MB = 1 << 20
QF = 0; KF = 2*MB; VF = 4*MB; HF = 6*MB; XN1 = 8*MB; X1 = 10*MB; MID = 12*MB; OF = 20*MB
W2F = 22*MB; W3F = 23*MB; W4F = 25*MB; WOF = 27*MB; GATE = 28*MB
WS_BYTES = 268435456

def f2u(x):
    return struct.unpack("<I", struct.pack("<f", x))[0]

class Asm:
    def __init__(self):
        self.lines = []
    def __call__(self, s):
        for l in s.split("\n"):
            l = l.strip()
            m = re.match(r"s_cselect_b32 (s\d+), (0x[0-9a-f]+|\d+), (0x[0-9a-f]+|\d+)\s*(;.*)?$", l)
            if m and int(m.group(2), 0) > 64 and int(m.group(3), 0) > 64:
                self.lines.append(f"    s_mov_b32 {m.group(1)}, {m.group(3)}")
                self.lines.append(f"    s_cselect_b32 {m.group(1)}, {m.group(2)}, {m.group(1)}")
                continue
            if l:
                if l.endswith(":") or l.startswith("."):
                    self.lines.append(l)
                else:
                    self.lines.append("    " + l)
    def text(self):
        return "\n".join(self.lines) + "\n"

def kernel_header(e, name):
    e(f".text\n.globl {name}\n.p2align 8\n.type {name},@function\n{name}:")

def kernel_desc(e, name, vgpr, sgpr=102):
    acc = (vgpr + 3) // 4 * 4
    e(f""".section .rodata,"a"
.p2align 6
.amdhsa_kernel {name}""")
    e.lines += [f"  .amdhsa_next_free_vgpr {vgpr}", f"  .amdhsa_next_free_sgpr {sgpr}", f"  .amdhsa_accum_offset {acc}",
                "  .amdhsa_group_segment_fixed_size 0", "  .amdhsa_kernarg_size 96", "  .amdhsa_user_sgpr_count 2",
                "  .amdhsa_user_sgpr_kernarg_segment_ptr 1", "  .amdhsa_system_sgpr_workgroup_id_x 1"]
    e(".end_amdhsa_kernel")

def srd(e, d, lo, hi, nbytes):
    e(f"s_mov_b32 s{d}, s{lo}")
    e(f"s_and_b32 s{d+1}, s{hi}, 0xffff")
    e(f"s_mov_b32 s{d+2}, {nbytes}")
    e(f"s_mov_b32 s{d+3}, 0x00020000")

LOG2E = math.log2(math.e)
GC1 = -2.0 * LOG2E * math.sqrt(2.0 / math.pi)
GC2 = GC1 * 0.044715

def gelu_block(e, regs, tmp, vc2):
    n = len(regs)
    for r, t in zip(regs, tmp):
        e(f"v_mul_f32 v{t}, v{r}, v{r}")
    for r, t in zip(regs, tmp):
        e(f"v_fmaak_f32 v{t}, v{vc2}, v{t}, 0x{f2u(GC1):08x}")
    for r, t in zip(regs, tmp):
        e(f"v_mul_f32 v{t}, v{t}, v{r}")
    for r, t in zip(regs, tmp):
        e(f"v_exp_f32 v{t}, v{t}")
    for r, t in zip(regs, tmp):
        e(f"v_add_f32 v{t}, 1.0, v{t}")
    for r, t in zip(regs, tmp):
        e(f"v_rcp_f32 v{t}, v{t}")
    for r, t in zip(regs, tmp):
        e(f"v_mul_f32 v{r}, v{r}, v{t}")
```

```python
from common import *

def gen_k1(e):
    name = "k1_kernel"
    kernel_header(e, name)
    e("""
    s_cmp_ge_u32 s2, 256
    s_cbranch_scc1 K1_END
    s_load_dwordx4 s[4:7], s[0:1], 0
    s_load_dwordx2 s[8:9], s[0:1], 32
    s_load_dwordx2 s[10:11], s[0:1], 88
    s_load_dwordx4 s[36:39], s[0:1], 40
    s_load_dwordx2 s[40:41], s[0:1], 56
    s_load_dwordx2 s[42:43], s[0:1], 16
    v_and_b32 v1, 63, v0
    v_lshrrev_b32 v2, 6, v0
    s_nop 0
    v_readfirstlane_b32 s26, v2
    s_and_b32 s24, s2, 15
    s_lshr_b32 s25, s2, 4
    s_lshl_b32 s34, s2, 2
    s_add_u32 s34, s34, s26
    s_lshl_b32 s32, s26, 12
    s_mov_b32 s60, 0
    s_mov_b32 s61, -1
    s_waitcnt lgkmcnt(0)
    """)
    srd(e, 12, 4, 5, S*D*2)
    srd(e, 20, 10, 11, WS_BYTES)
    e("""
    s_cmp_ge_u32 s25, 12
    s_cselect_b32 s16, s8, s6
    s_cselect_b32 s17, s9, s7
    s_cselect_b32 s18, 401408, 1204224
    s_cselect_b32 s27, 896, 2688
    s_cselect_b32 s29, 64, 56
    s_mul_i32 s28, s25, 224
    s_sub_u32 s35, s25, 12
    s_lshl_b32 s35, s35, 8
    s_cmp_ge_u32 s25, 12
    s_cselect_b32 s28, s35, s28
    s_and_b32 s17, s17, 0xffff
    s_mov_b32 s19, 0x00020000
    s_lshl_b32 s33, s27, 6
    """)
    e("""
    v_lshrrev_b32 v20, 2, v1
    v_and_b32 v21, 3, v1                ; q
    v_bfe_u32 v22, v1, 4, 2             ; (token>>2)&3 = (j>>4)&3
    v_xor_b32 v21, v21, v22             ; p
    s_lshl_b32 s35, s24, 7
    s_lshl_b32 s48, s26, 5
    s_add_u32 s35, s35, s48             ; tb*128 + 32w
    v_add_u32 v20, s35, v20
    v_mul_u32_u24 v20, 896, v20
    v_lshl_add_u32 v2, v21, 4, v20
    v_add_u32 v3, 64, v2
    v_add_u32 v4, 14336, v2
    v_add_u32 v5, 14400, v2
    """)
    e("""
    v_lshrrev_b32 v20, 4, v1            ; r4
    v_lshlrev_b32 v21, 2, v20           ; 4*r4
    v_sub_u32 v21, v1, v21
    v_and_b32 v21, 15, v21              ; p = (q - 4 r4)&15
    s_lshl_b32 s35, s26, 4
    v_add_u32 v20, s35, v20             ; 16w + r4
    v_mul_lo_u32 v20, v20, s27
    v_lshl_add_u32 v20, v21, 4, v20
    v_add_u32 v6, s28, v20
    s_lshl_b32 s35, s27, 2
    v_add_u32 v7, s35, v6
    v_add_u32 v8, s35, v7
    v_add_u32 v9, s35, v8
    """)
    e("""
    v_and_b32 v26, 31, v1
    v_lshlrev_b32 v26, 1, v26
    v_lshrrev_b32 v27, 5, v1
    v_lshlrev_b32 v27, 2, v27
    s_mov_b32 s47, 0x00020000
    """)
    M28 = (1 << 32) // 28 + 1; M112 = (1 << 32) // 112 + 1
    for slot in range(4):
        dst = 52 + slot
        rv = 128 + 8*slot
        lab = f"K1_RSKIP{slot}"
        if slot == 0:
            e(f"""
            s_mov_b32 s48, s34
            s_mov_b32 s44, s38
            s_mov_b32 s45, s39
            s_mov_b32 s46, {D*F*2}
            s_mov_b32 s49, 3584
            s_mov_b32 s50, {W3F}
            s_mul_hi_u32 s56, s48, {M28}
            s_mul_i32 s57, s56, 28
            s_sub_u32 s57, s48, s57
            s_lshl_b32 s58, s57, 4
            s_mov_b32 s59, 0
            """)
        elif slot == 1:
            e(f"""
            s_mov_b32 s{dst}, -1
            s_cmp_ge_u32 s34, 936
            s_cbranch_scc1 {lab}
            s_add_u32 s48, s34, 1024
            s_sub_u32 s35, s34, 544
            s_cmp_lt_u32 s34, 544
            s_cselect_b32 s48, s48, s35
            s_cselect_b32 s44, s38, s36
            s_cselect_b32 s45, s39, s37
            s_cselect_b32 s46, {D*F*2}, {D*D*2}
            s_cselect_b32 s49, 3584, 896
            s_cselect_b32 s50, {W3F}, {W2F}
            s_mul_hi_u32 s56, s48, {M28}
            s_mul_i32 s57, s56, 28
            s_sub_u32 s57, s48, s57
            s_lshl_b32 s58, s57, 4
            s_mov_b32 s59, 0
            """)
        elif slot == 2:
            e(f"""
            s_mov_b32 s48, s34
            s_mov_b32 s44, s40
            s_mov_b32 s45, s41
            s_mov_b32 s46, {D*F*2}
            s_mov_b32 s49, 896
            s_mov_b32 s50, {W4F}
            s_mul_hi_u32 s56, s48, {M112}
            s_mul_i32 s57, s56, 112
            s_sub_u32 s57, s48, s57
            s_lshl_b32 s58, s57, 4
            s_mov_b32 s59, 0
            """)
        else:
            e(f"""
            s_mov_b32 s{dst}, -1
            s_cmp_ge_u32 s34, 992
            s_cbranch_scc1 {lab}
            s_add_u32 s48, s34, 1024
            s_mul_hi_u32 s56, s48, {M112}
            s_mul_i32 s57, s56, 112
            s_sub_u32 s57, s48, s57
            s_lshl_b32 s58, s57, 4
            s_sub_u32 s35, s34, 544
            s_lshr_b32 s62, s35, 5
            s_and_b32 s63, s35, 31
            s_lshr_b32 s64, s63, 1
            s_mul_i32 s64, s64, 28
            s_and_b32 s63, s63, 1
            s_lshl_b32 s65, s63, 4
            s_add_u32 s64, s64, s65
            s_lshl_b32 s63, s63, 30
            s_cmp_lt_u32 s34, 544
            s_cselect_b32 s48, s48, s35
            s_cselect_b32 s44, s40, s42
            s_cselect_b32 s45, s41, s43
            s_cselect_b32 s46, {D*F*2}, {D*D*2}
            s_mov_b32 s49, 896
            s_cselect_b32 s50, {W4F}, {WOF}
            s_cselect_b32 s56, s56, s62
            s_cselect_b32 s58, s58, s64
            s_cselect_b32 s59, 0, s63
            """)
        e(f"""
        s_and_b32 s45, s45, 0xffff
        s_lshl_b32 s35, s48, 10
        s_add_u32 s{dst}, s50, s35
        s_mul_i32 s58, s58, s49
        s_lshl_b32 s56, s56, 6
        s_add_u32 s58, s58, s56
        v_mul_lo_u32 v28, v27, s49
        v_add_u32 v28, v28, v26
        v_lshrrev_b32 v29, 2, v27
        v_mul_lo_u32 v29, v29, s59
        v_add_u32 v29, v29, v28
        """)
        for j in range(8):
            jrow = 8*(j >> 2) + (j & 3)
            va = 29 if j >= 4 else 28
            op = "buffer_load_ushort"
            if jrow == 0:
                e(f"{op} v{rv + j}, v{va}, s[44:47], s58 offen")
            else:
                e(f"s_mul_i32 s35, s49, {jrow}")
                e(f"s_add_u32 s35, s35, s58")
                e(f"{op} v{rv + j}, v{va}, s[44:47], s35 offen")
        if slot in (1, 3):
            e(f"{lab}:")
    e("""
    v_lshrrev_b32 v20, 5, v1            ; hh
    v_bfe_u32 v21, v1, 2, 2             ; (l>>2)&3
    v_bfe_u32 v22, v1, 4, 1             ; (l&31)>>4
    s_and_b32 s35, s26, 1
    s_lshl_b32 s35, s35, 2
    v_add_u32 v22, s35, v22
    v_lshlrev_b32 v22, 11, v22          ; *2048
    v_and_b32 v23, 15, v1
    v_lshl_add_u32 v22, v23, 6, v22     ; + (l&15)*64
    v_xor_b32 v23, v20, v21
    v_lshl_add_u32 v10, v23, 4, v22
    v_xor_b32 v23, 2, v23
    v_lshl_add_u32 v11, v23, 4, v22
    v_add_u32 v12, 0x10000, v10
    v_add_u32 v13, 0x10000, v11
    """)
    e("""
    v_lshl_add_u32 v22, v20, 3, v21     ; 8hh + r   (r = (l>>2)&3)
    v_lshlrev_b32 v22, 8, v22
    v_bfe_u32 v23, v1, 4, 1
    v_lshlrev_b32 v23, 5, v23
    v_and_b32 v24, 3, v1
    v_lshl_add_u32 v23, v24, 3, v23
    v_lshl_add_u32 v23, v21, 6, v23     ; + 64 r
    s_lshr_b32 s35, s26, 1
    s_lshl_b32 s35, s35, 1
    s_mul_i32 s35, s35, s29
    v_add_u32 v24, s35, v23
    v_and_b32 v24, 255, v24
    v_add_u32 v14, v22, v24
    s_add_u32 s35, s35, s29
    v_add_u32 v24, s35, v23
    v_and_b32 v24, 255, v24
    v_add_u32 v15, v22, v24
    v_add_u32 v16, 0x10000, v14
    v_add_u32 v17, 0x10000, v15
    v_mov_b32 v18, 0x3f803f80
    """)
    for r in range(20, 26):
        e(f"v_mov_b32 v{r}, 0")
    for r in range(64, 128):
        e(f"v_mov_b32 v{r}, 0")

    def dma(c):
        b = c % 4
        e(f"s_mov_b32 s30, {c*128}")
        e(f"s_mul_i32 s31, s33, {c}")
        for i in range(4):
            e(f"s_add_u32 m0, s32, {b*32768 + i*1024}")
            e(f"s_nop 0")
            e(f"buffer_load_dwordx4 v{2+i}, s[12:15], s30 offen lds")
        for i in range(4):
            e(f"s_add_u32 m0, s32, {b*32768 + 16384 + i*1024}")
            e(f"s_nop 0")
            e(f"buffer_load_dwordx4 v{6+i}, s[16:19], s31 offen lds")

    def reads(c, s):
        P = s & 1
        base = (c % 4) * 32768
        hi = 1 if base >= 65536 else 0
        bm = base - 65536*hi
        fr = 32 + 16*P
        for b in range(2):
            e(f"ds_read_b128 v[{fr+4*b}:{fr+4*b+3}], v{10 + (s&1) + 2*hi} offset:{bm + b*4096 + (s>>1)*1024}")
        for ct in range(2):
            for u in range(2):
                e(f"ds_read_b64_tr_b16 v[{fr+8+4*ct+2*u}:{fr+8+4*ct+2*u+1}], v{14+ct+2*hi} offset:{bm + 16384 + (16*s+4*u)*256}")

    def mainloop(kind):
        for c in range(7):
            for s in range(4):
                P = s & 1
                fr = 32 + 16*P
                if s < 3:
                    reads(c, s+1)
                    e("s_waitcnt lgkmcnt(6)")
                else:
                    if c < 6:
                        out = min(6, c+2) - (c+1)
                        e(f"s_waitcnt vmcnt({8*out})")
                        e("s_barrier")
                        if c + 3 <= 6:
                            dma(c+3)
                        reads(c+1, 0)
                        e("s_waitcnt lgkmcnt(6)")
                    else:
                        e("s_waitcnt lgkmcnt(0)")
                for b in range(2):
                    for ct in range(2):
                        acc = 64 + 16*(2*b+ct)
                        xf = fr + 4*b; wf = fr + 8 + 4*ct
                        if kind == 'V':
                            e(f"v_mfma_f32_32x32x16_bf16 v[{acc}:{acc+15}], v[{xf}:{xf+3}], v[{wf}:{wf+3}], v[{acc}:{acc+15}]")
                        else:
                            e(f"v_mfma_f32_32x32x16_bf16 v[{acc}:{acc+15}], v[{wf}:{wf+3}], v[{xf}:{xf+3}], v[{acc}:{acc+15}]")
                    if kind == 'H':
                        xf = fr + 4*b
                        for i in range(4):
                            e(f"v_dot2_f32_bf16 v{20+b}, v{xf+i}, v18, v{20+b}")
                            e(f"v_dot2_f32_bf16 v{22+b}, v{xf+i}, v{xf+i}, v{22+b}")
                        wf = fr + 8 + 4*b
                        for i in range(4):
                            e(f"v_dot2_f32_bf16 v{24+b}, v{wf+i}, v18, v{24+b}")

    dma(0); dma(1); dma(2)
    e("s_waitcnt vmcnt(16)")
    e("s_barrier")
    reads(0, 0)
    e("""
    s_cmp_ge_u32 s25, 12
    s_cbranch_scc1 K1_LOOP_H
    s_cmp_ge_u32 s25, 8
    s_cbranch_scc1 K1_LOOP_V
    """)
    mainloop('QK')
    scale = DH ** -0.5 * LOG2E
    e(f"""
    s_cmp_ge_u32 s25, 4
    s_cselect_b32 s35, 1.0, 0x{f2u(scale):08x}
    s_cselect_b32 s48, 0x3f80, 0
    s_lshl_b32 s49, s25, 19
    s_lshr_b32 s50, s26, 1
    s_lshl_b32 s50, s50, 18
    s_add_u32 s49, s49, s50
    s_lshl_b32 s50, s24, 13
    s_add_u32 s49, s49, s50
    s_and_b32 s50, s26, 1
    s_lshl_b32 s50, s50, 12             ; 2 tokblk * 2048
    s_add_u32 s49, s49, s50
    v_lshlrev_b32 v2, 4, v1
    v_mov_b32 v3, s48
    s_nop 7
    """)
    for b in range(2):
        for ct in range(2):
            acc = 64 + 16*(2*b+ct)
            for r in range(16):
                e(f"v_mul_f32 v{acc+r}, s35, v{acc+r}")
            for i in range(8):
                e(f"v_cvt_pk_bf16_f32 v{32+i}, v{acc+2*i}, v{acc+2*i+1}")
            e(f"v_cndmask_b32 v38, v38, v3, s[60:61]")
            e(f"v_cndmask_b32 v39, v39, 0, s[60:61]")
            e(f"s_add_u32 s50, s49, {ct*131072 + b*2048}")
            e(f"buffer_store_dwordx4 v[32:35], v2, s[20:23], s50 offen")
            e(f"buffer_store_dwordx4 v[36:39], v2, s[20:23], s50 offen offset:1024")
            e("s_nop 1")
    e("s_branch K1_RSTORE")
    e("K1_LOOP_V:")
    mainloop('V')
    e(f"""
    s_lshl_b32 s49, s25, 19
    s_lshr_b32 s50, s26, 1
    s_lshl_b32 s50, s50, 18
    s_add_u32 s49, s49, s50
    s_lshl_b32 s50, s24, 13
    s_add_u32 s49, s49, s50
    s_and_b32 s50, s26, 1
    s_lshl_b32 s50, s50, 12
    s_add_u32 s49, s49, s50
    v_lshlrev_b32 v2, 4, v1
    v_and_b32 v3, 31, v1
    v_cmp_le_u32 s[62:63], 28, v3
    v_cmp_eq_u32 vcc, 28, v3
    s_nop 1
    v_cndmask_b32 v3, 0, v18, vcc
    s_nop 7
    """)
    for b in range(2):
        for ct in range(2):
            acc = 64 + 16*(2*b+ct)
            for i in range(8):
                e(f"v_cvt_pk_bf16_f32 v{32+i}, v{acc+2*i}, v{acc+2*i+1}")
            for i in range(8):
                e(f"v_cndmask_b32 v{32+i}, v{32+i}, v3, s[62:63]")
            e(f"s_add_u32 s50, s49, {ct*131072 + b*2048}")
            e(f"buffer_store_dwordx4 v[32:35], v2, s[20:23], s50 offen")
            e(f"buffer_store_dwordx4 v[36:39], v2, s[20:23], s50 offen offset:1024")
            e("s_nop 1")
    e("s_branch K1_RSTORE")
    e("K1_LOOP_H:")
    mainloop('H')
    for r in range(20, 26):
        e(f"v_mov_b32 v{r+6}, v{r}")
    e("s_nop 1")
    for r in range(20, 26):
        e(f"v_permlane32_swap_b32 v{r}, v{r+6}")
    for r in range(20, 26):
        e(f"v_add_f32 v{r}, v{r}, v{r+6}")
    e(f"""
    v_and_b32 v2, 31, v1
    v_lshlrev_b32 v2, 2, v2
    s_lshl_b32 s35, s26, 9
    s_add_u32 s35, s35, {3*32768}
    v_add_u32 v2, s35, v2
    ds_write_b32 v2, v24
    ds_write_b32 v2, v25 offset:128
    v_lshrrev_b32 v3, 5, v1
    v_lshlrev_b32 v3, 4, v3
    v_add_u32 v3, s35, v3
    v_mul_f32 v20, 0x{f2u(1.0/448):08x}, v20
    v_mul_f32 v21, 0x{f2u(1.0/448):08x}, v21
    v_mul_f32 v22, 0x{f2u(1.0/448):08x}, v22
    v_mul_f32 v23, 0x{f2u(1.0/448):08x}, v23
    v_fma_f32 v22, -v20, v20, v22
    v_fma_f32 v23, -v21, v21, v23
    v_max_f32 v22, 0, v22
    v_max_f32 v23, 0, v23
    v_add_f32 v22, 0x{f2u(1e-5):08x}, v22
    v_add_f32 v23, 0x{f2u(1e-5):08x}, v23
    v_rsq_f32 v22, v22
    v_rsq_f32 v23, v23
    s_waitcnt lgkmcnt(0)
    """)
    for ct in range(2):
        for q in range(4):
            e(f"ds_read_b128 v[{160+16*ct+4*q}:{160+16*ct+4*q+3}], v3 offset:{ct*128 + q*32}")
    e(f"""
    s_sub_u32 s49, s25, 12
    s_lshl_b32 s49, s49, 2
    s_lshr_b32 s50, s26, 1
    s_lshl_b32 s50, s50, 1
    s_add_u32 s48, s49, s50
    s_lshl_b32 s49, s48, 11
    s_lshl_b32 s50, s24, 2
    s_and_b32 s35, s26, 1
    s_lshl_b32 s35, s35, 1
    s_add_u32 s50, s50, s35
    s_mul_i32 s50, s50, 28672
    s_add_u32 s49, s49, s50
    s_add_u32 s49, s49, {HF}
    v_lshlrev_b32 v2, 4, v1
    v_mov_b32 v19, 0x{f2u(GC2):08x}
    s_cmp_ge_u32 s48, 14
    s_cbranch_scc1 K1_RSTORE
    s_waitcnt lgkmcnt(0)
    """)
    for b in range(2):
        for ct in range(2):
            acc = 64 + 16*(2*b+ct)
            for r in range(16):
                e(f"v_fma_f32 v{acc+r}, -v{20+b}, v{160+16*ct+r}, v{acc+r}")
            for r in range(16):
                e(f"v_mul_f32 v{acc+r}, v{22+b}, v{acc+r}")
            gelu_block(e, list(range(acc, acc+16)), list(range(40, 56)), 19)
            for i in range(8):
                e(f"v_cvt_pk_bf16_f32 v{32+i}, v{acc+2*i}, v{acc+2*i+1}")
            e(f"s_add_u32 s50, s49, {ct*2048 + b*28672}")
            e(f"buffer_store_dwordx4 v[32:35], v2, s[20:23], s50 offen")
            e(f"buffer_store_dwordx4 v[36:39], v2, s[20:23], s50 offen offset:1024")
            e("s_nop 1")
    e("K1_RSTORE:")
    e("v_lshlrev_b32 v2, 4, v1")
    for slot in range(4):
        rv = 128 + 8*slot
        if slot in (1, 3):
            e(f"s_cmp_eq_u32 s{52+slot}, -1")
            e(f"s_cbranch_scc1 K1_RS{slot}")
        for i in range(4):
            e(f"v_lshl_or_b32 v{rv+i}, v{rv+2*i+1}, 16, v{rv+2*i}")
        e(f"buffer_store_dwordx4 v[{rv}:{rv+3}], v2, s[20:23], s{52+slot} offen")
        if slot in (1, 3):
            e(f"K1_RS{slot}:")
    e("K1_END:")
    e("s_endpgm")
    kernel_desc(e, name, 192)
```

```python
import sys, importlib
from common import *
import k1
HEADER = open("gated_mix__mha_block__mixer_s_mlp__prompt.s.ref").read().split("; Override launch geometry")[0]
def build(kernels):
    out = HEADER
    launches = {
        'k0': "; @launch kernel=k0_kernel grid=(1,1,1) block=(64,1,1) lds=0",
        'k1': "; @launch kernel=k1_kernel grid=(256,1,1) block=(512,1,1) lds=131072",
        'k2': "; @launch kernel=k2_kernel grid=(736,1,1) block=(256,1,1) lds=49152",
        'k3': "; @launch kernel=k3_kernel grid=(224,1,1) block=(512,1,1) lds=131072",
        'km': "; @launch kernel=km_kernel grid=(480,1,1) block=(512,1,1) lds=81920",
        'k4': "; @launch kernel=k4_kernel grid=(224,1,1) block=(256,1,1) lds=65536",
    }
    for k in kernels:
        out += launches[k] + "\n"
    out += '.amdgcn_target "amdgcn-amd-amdhsa--gfx950"\n'
    e = Asm()
    for k in kernels:
        m = importlib.import_module(k)
        getattr(m, "gen_" + k)(e)
    out += e.text()
    return out
if __name__ == "__main__":
    ks = sys.argv[1].split(",") if len(sys.argv) > 1 else ['k1','km']
    dst = sys.argv[2] if len(sys.argv) > 2 else "gated_mix__mha_block__mixer_s_mlp__prompt.s"
    open(dst, "w").write(build(ks))
```

```python
import math, struct, re

S = 2048; D = 448; H = 16; DH = 28; F = 1792
MB = 1 << 20
QF = 0; KF = 2*MB; VF = 4*MB; HF = 6*MB; XN1 = 8*MB; X1 = 10*MB; MID = 12*MB; OF = 20*MB
W2F = 22*MB; W3F = 23*MB; W4F = 25*MB; WOF = 27*MB; GATE = 28*MB
WS_BYTES = 268435456

def f2u(x):
    return struct.unpack("<I", struct.pack("<f", x))[0]

class Asm:
    def __init__(self):
        self.lines = []
    def __call__(self, s):
        for l in s.split("\n"):
            l = l.strip()
            m = re.match(r"s_cselect_b32 (s\d+), (0x[0-9a-f]+|\d+), (0x[0-9a-f]+|\d+)\s*(;.*)?$", l)
            if m and int(m.group(2), 0) > 64 and int(m.group(3), 0) > 64:
                self.lines.append(f"    s_mov_b32 {m.group(1)}, {m.group(3)}")
                self.lines.append(f"    s_cselect_b32 {m.group(1)}, {m.group(2)}, {m.group(1)}")
                continue
            if l:
                if l.endswith(":") or l.startswith("."):
                    self.lines.append(l)
                else:
                    self.lines.append("    " + l)
    def text(self):
        return "\n".join(self.lines) + "\n"

def kernel_header(e, name):
    e(f".text\n.globl {name}\n.p2align 8\n.type {name},@function\n{name}:")

def kernel_desc(e, name, vgpr, sgpr=102):
    acc = (vgpr + 3) // 4 * 4
    e(f""".section .rodata,"a"
.p2align 6
.amdhsa_kernel {name}""")
    e.lines += [f"  .amdhsa_next_free_vgpr {vgpr}", f"  .amdhsa_next_free_sgpr {sgpr}", f"  .amdhsa_accum_offset {acc}",
                "  .amdhsa_group_segment_fixed_size 0", "  .amdhsa_kernarg_size 96", "  .amdhsa_user_sgpr_count 2",
                "  .amdhsa_user_sgpr_kernarg_segment_ptr 1", "  .amdhsa_system_sgpr_workgroup_id_x 1"]
    e(".end_amdhsa_kernel")

def srd(e, d, lo, hi, nbytes):
    e(f"s_mov_b32 s{d}, s{lo}")
    e(f"s_and_b32 s{d+1}, s{hi}, 0xffff")
    e(f"s_mov_b32 s{d+2}, {nbytes}")
    e(f"s_mov_b32 s{d+3}, 0x00020000")

LOG2E = math.log2(math.e)
GC1 = -2.0 * LOG2E * math.sqrt(2.0 / math.pi)
GC2 = GC1 * 0.044715

def gelu_block(e, regs, tmp, vc2):
    n = len(regs)
    for r, t in zip(regs, tmp):
        e(f"v_mul_f32 v{t}, v{r}, v{r}")
    for r, t in zip(regs, tmp):
        e(f"v_fmaak_f32 v{t}, v{vc2}, v{t}, 0x{f2u(GC1):08x}")
    for r, t in zip(regs, tmp):
        e(f"v_mul_f32 v{t}, v{t}, v{r}")
    for r, t in zip(regs, tmp):
        e(f"v_exp_f32 v{t}, v{t}")
    for r, t in zip(regs, tmp):
        e(f"v_add_f32 v{t}, 1.0, v{t}")
    for r, t in zip(regs, tmp):
        e(f"v_rcp_f32 v{t}, v{t}")
    for r, t in zip(regs, tmp):
        e(f"v_mul_f32 v{r}, v{r}, v{t}")

import os
DIAG = os.environ.get("DIAG", "")
DBGOFF = 40*MB
def stamp(e, kern, i):
    if kern in DIAG:
        e(f"s_memtime s[{70+2*i}:{71+2*i}]")
def stamp_flush(e, kern, n, kidx):
    if kern not in DIAG: return
    e("s_waitcnt lgkmcnt(0) vmcnt(0)")
    e(f"s_lshl_b32 s68, s2, 3")
    e(f"s_add_u32 s68, s68, s26")
    e(f"s_lshl_b32 s68, s68, 6")
    e(f"s_add_u32 s68, s68, {DBGOFF + kidx*MB}")
    e("v_mov_b32 v0, 0")
    for i in range(n):
        e(f"v_mov_b32 v1, s{70+2*i}")
        e(f"buffer_store_dword v1, v0, s[20:23], s68 offen offset:{4*i}")
    e("s_getreg_b32 s69, hwreg(HW_REG_HW_ID)")
    e("v_mov_b32 v1, s69")
    e(f"buffer_store_dword v1, v0, s[20:23], s68 offen offset:56")
    e("s_getreg_b32 s69, hwreg(HW_REG_XCC_ID)")
    e("v_mov_b32 v1, s69")
    e(f"buffer_store_dword v1, v0, s[20:23], s68 offen offset:60")

def gelu_pk(e, regs, tmp, vc):
    n = len(regs)
    P = [(regs[i], tmp[i]) for i in range(0, n, 2)]
    for r, t in P:
        e(f"v_pk_mul_f32 v[{t}:{t+1}], v[{r}:{r+1}], v[{r}:{r+1}]")
    for r, t in P:
        e(f"v_pk_fma_f32 v[{t}:{t+1}], v[{t}:{t+1}], v[{vc}:{vc+1}], v[{vc+2}:{vc+3}]")
    for r, t in P:
        e(f"v_pk_mul_f32 v[{t}:{t+1}], v[{t}:{t+1}], v[{r}:{r+1}]")
    for t in tmp:
        e(f"v_exp_f32 v{t}, v{t}")
    for r, t in P:
        e(f"v_pk_add_f32 v[{t}:{t+1}], v[{t}:{t+1}], 1.0 op_sel_hi:[1,0]")
    for t in tmp:
        e(f"v_rcp_f32 v{t}, v{t}")
    for r, t in P:
        e(f"v_pk_mul_f32 v[{r}:{r+1}], v[{r}:{r+1}], v[{t}:{t+1}]")

def gelu_consts(e, vc):
    e(f"v_mov_b32 v{vc}, 0x{f2u(GC2):08x}")
    e(f"v_mov_b32 v{vc+1}, 0x{f2u(GC2):08x}")
    e(f"v_mov_b32 v{vc+2}, 0x{f2u(GC1):08x}")
    e(f"v_mov_b32 v{vc+3}, 0x{f2u(GC1):08x}")

def gemm_loop(e, kind, dma, reads, nreads, tag, gwreg=None, extra=(0,0,0,0,0,0)):
    for c in range(7):
        for s in range(4):
            P = s & 1
            fr = 32 + 12*P
            if s < 3:
                e(f"s_setprio {2-s}")
                reads(c, s+1)
                e(f"s_waitcnt lgkmcnt({nreads})")
            else:
                if c < 6:
                    out = min(6, c+2) - (c+1)
                    e(f"s_waitcnt vmcnt({4*out + extra[c]})")
                    e("s_barrier")
                    e("s_setprio 3")
                    if c + 3 <= 6:
                        dma(c+3)
                    reads(c+1, 0)
                    e(f"s_waitcnt lgkmcnt({nreads})")
                else:
                    e("s_waitcnt lgkmcnt(0)")
            for b in range(2):
                acc = 64 + 16*b
                xf = fr + 4*b; wf = fr + 8
                cc = "0" if (c == 0 and s == 0) else f"v[{acc}:{acc+15}]"
                if kind == 'V':
                    e(f"v_mfma_f32_32x32x16_bf16 v[{acc}:{acc+15}], v[{xf}:{xf+3}], v[{wf}:{wf+3}], {cc}")
                else:
                    e(f"v_mfma_f32_32x32x16_bf16 v[{acc}:{acc+15}], v[{wf}:{wf+3}], v[{xf}:{xf+3}], {cc}")
            if kind == 'H':
                lab = f"{tag}_S{c}_{s}"
                e(f"s_cmp_lg_u32 s53, {s}")
                e(f"s_cbranch_scc1 {lab}a")
                for b in range(2):
                    xf = fr + 4*b
                    for i in range(4):
                        e(f"v_dot2_f32_bf16 v{20+b}, v{xf+i}, v18, v{20+b}")
                        e(f"v_dot2_f32_bf16 v{22+b}, v{xf+i}, v{xf+i}, v{22+b}")
                e(f"{lab}a:")
                e(f"s_cmp_lg_u32 s52, {s&1}")
                e(f"s_cbranch_scc1 {lab}b")
                for i in range(4):
                    e(f"v_dot2_f32_bf16 v24, v{fr+8+i}, v18, v24")
                e(f"{lab}b:")
                if gwreg is not None:
                    e(f"s_cmp_eq_u32 s54, 0")
                    e(f"s_cbranch_scc1 {lab}c")
                    g = gwreg + 4*(4*c+s)
                    for b in range(2):
                        xf = fr + 4*b
                        for i in range(4):
                            e(f"v_dot2_f32_bf16 v{25+b}, v{xf+i}, v{g+i}, v{25+b}")
                    e(f"{lab}c:")

def ln_epilogue(e, ldsbase):
    for r in range(20, 25):
        e(f"v_mov_b32 v{r+6}, v{r}")
    e("s_nop 1")
    for r in range(20, 25):
        e(f"v_permlane32_swap_b32 v{r}, v{r+6}")
    for r in range(20, 25):
        e(f"v_add_f32 v{r}, v{r}, v{r+6}")
    e(f"""
    v_and_b32 v2, 31, v1
    v_lshlrev_b32 v2, 2, v2
    s_lshl_b32 s35, s52, 11
    s_lshl_b32 s36, s53, 9
    s_add_u32 s36, s36, s35
    s_add_u32 s36, s36, {ldsbase}
    v_add_u32 v3, s36, v2
    ds_write_b32 v3, v20
    ds_write_b32 v3, v21 offset:128
    ds_write_b32 v3, v22 offset:256
    ds_write_b32 v3, v23 offset:384
    s_lshl_b32 s36, s53, 8
    s_lshl_b32 s37, s52, 7
    s_add_u32 s37, s37, s36
    s_add_u32 s37, s37, {ldsbase + 4096}
    v_add_u32 v3, s37, v2
    ds_write_b32 v3, v24
    s_add_u32 s35, s35, {ldsbase}
    v_add_u32 v3, s35, v2
    v_lshrrev_b32 v4, 5, v1
    v_lshlrev_b32 v4, 4, v4
    s_add_u32 s36, s36, {ldsbase + 4096}
    v_add_u32 v4, s36, v4
    s_waitcnt lgkmcnt(0)
    s_barrier
    """)
    for q in range(4):
        for v in range(4):
            e(f"ds_read_b32 v{32+4*q+v}, v3 offset:{q*512 + v*128}")
    for q in range(4):
        e(f"ds_read_b128 v[{96+4*q}:{99+4*q}], v4 offset:{q*32}")
        e(f"ds_read_b128 v[{112+4*q}:{115+4*q}], v4 offset:{128 + q*32}")
    e("s_waitcnt lgkmcnt(8)")
    for v in range(4):
        e(f"v_add_f32 v{20+v}, v{32+v}, v{36+v}")
        e(f"v_add_f32 v{40+v}, v{40+v}, v{44+v}")
    for v in range(4):
        e(f"v_add_f32 v{20+v}, v{20+v}, v{40+v}")
    e(f"""
    v_mul_f32 v20, 0x{f2u(1.0/448):08x}, v20
    v_mul_f32 v21, 0x{f2u(1.0/448):08x}, v21
    v_mul_f32 v22, 0x{f2u(1.0/448):08x}, v22
    v_mul_f32 v23, 0x{f2u(1.0/448):08x}, v23
    v_fma_f32 v22, -v20, v20, v22
    v_fma_f32 v23, -v21, v21, v23
    v_max_f32 v22, 0, v22
    v_max_f32 v23, 0, v23
    v_add_f32 v22, 0x{f2u(1e-5):08x}, v22
    v_add_f32 v23, 0x{f2u(1e-5):08x}, v23
    v_rsq_f32 v22, v22
    v_rsq_f32 v23, v23
    s_waitcnt lgkmcnt(0)
    """)
    for r in range(16):
        e(f"v_add_f32 v{96+r}, v{96+r}, v{112+r}")

def ln_gelu_store(e, sdst, bstride):
    gelu_consts(e, 28)
    for b in range(2):
        acc = 64 + 16*b
        for r in range(16):
            e(f"v_fma_f32 v{acc+r}, -v{20+b}, v{96+r}, v{acc+r}")
        for r in range(16):
            e(f"v_mul_f32 v{acc+r}, v{22+b}, v{acc+r}")
        gelu_pk(e, list(range(acc, acc+16)), list(range(40, 56)), 28)
        for i in range(8):
            e(f"v_cvt_pk_bf16_f32 v{32+i}, v{acc+2*i}, v{acc+2*i+1}")
        e(f"s_add_u32 s50, {sdst}, {b*bstride}")
        e(f"buffer_store_dwordx4 v[32:35], v2, s[20:23], s50 offen")
        e(f"buffer_store_dwordx4 v[36:39], v2, s[20:23], s50 offen offset:1024")
        e("s_nop 1")
```

```python
from common import *

def gen_k1(e):
    name = "k1_kernel"
    kernel_header(e, name)
    e("""
    s_cmp_ge_u32 s2, 256
    s_cbranch_scc1 K1_END
    s_load_dwordx4 s[4:7], s[0:1], 0
    s_load_dwordx2 s[8:9], s[0:1], 32
    s_load_dwordx2 s[10:11], s[0:1], 88
    s_load_dwordx4 s[36:39], s[0:1], 40
    s_load_dwordx4 s[40:43], s[0:1], 56     ; w4, gate_w
    s_load_dwordx2 s[66:67], s[0:1], 16     ; wo
    v_and_b32 v1, 63, v0
    v_lshrrev_b32 v2, 6, v0
    s_nop 0
    v_readfirstlane_b32 s26, v2
    s_and_b32 s24, s2, 15
    s_lshr_b32 s25, s2, 4
    s_lshl_b32 s34, s2, 3
    s_add_u32 s34, s34, s26
    s_lshl_b32 s32, s26, 11             ; w*2048
    s_and_b32 s52, s26, 1               ; th
    s_lshr_b32 s53, s26, 1              ; nq
    s_mov_b32 s60, 0
    s_mov_b32 s61, -1
    s_cmp_ge_u32 s25, 12
    s_cselect_b32 s27, 896, 2688
    s_cselect_b32 s29, 64, 56
    s_mul_i32 s28, s25, 224
    s_sub_u32 s35, s25, 12
    s_lshl_b32 s35, s35, 8
    s_cmp_ge_u32 s25, 12
    s_cselect_b32 s28, s35, s28
    s_lshl_b32 s33, s27, 6
    """)
    e("""
    v_lshrrev_b32 v20, 2, v1
    v_and_b32 v21, 3, v1
    v_bfe_u32 v22, v1, 4, 2
    v_xor_b32 v21, v21, v22
    s_lshl_b32 s35, s24, 7
    s_lshl_b32 s48, s26, 4
    s_add_u32 s35, s35, s48             ; tb*128 + 16w
    v_add_u32 v20, s35, v20
    v_mul_u32_u24 v20, 896, v20
    v_lshl_add_u32 v2, v21, 4, v20
    v_add_u32 v3, 64, v2
    v_lshrrev_b32 v20, 4, v1            ; r4
    v_lshlrev_b32 v21, 2, v20
    v_sub_u32 v21, v1, v21
    v_and_b32 v21, 15, v21
    s_lshl_b32 s35, s26, 3
    v_add_u32 v20, s35, v20             ; 8w + r4
    v_mul_lo_u32 v20, v20, s27
    v_lshl_add_u32 v20, v21, 4, v20
    v_add_u32 v6, s28, v20
    s_lshl_b32 s35, s27, 2
    v_add_u32 v7, s35, v6
    s_waitcnt lgkmcnt(0)
    """)
    srd(e, 12, 4, 5, S*D*2)
    srd(e, 20, 10, 11, WS_BYTES)
    stamp(e, "k1", 0)
    e("""
    s_cmp_ge_u32 s25, 12
    s_cselect_b32 s16, s8, s6
    s_cselect_b32 s17, s9, s7
    s_cselect_b32 s18, 401408, 1204224
    s_and_b32 s17, s17, 0xffff
    s_mov_b32 s19, 0x00020000
    """)
    GW = 128
    e(f"""
    s_mov_b32 s54, 0
    s_cmp_lg_u32 s25, 15
    s_cbranch_scc1 K1_NOGW
    s_cmp_lg_u32 s53, 2
    s_cbranch_scc1 K1_NOGW
    s_mov_b32 s54, 1
    """)
    srd(e, 44, 42, 43, D*2)
    e("""
    v_lshrrev_b32 v20, 5, v1
    v_lshlrev_b32 v20, 4, v20
    """)
    for ks in range(28):
        e(f"buffer_load_dwordx4 v[{GW+4*ks}:{GW+4*ks+3}], v20, s[44:47], 0 offen offset:{32*ks}")
    e("K1_NOGW:")

    def dma(c):
        b = c % 4
        e(f"s_mov_b32 s30, {c*128}")
        e(f"s_mul_i32 s31, s33, {c}")
        for i in range(2):
            e(f"s_add_u32 m0, s32, {b*32768 + i*1024}")
            e(f"s_nop 0")
            e(f"buffer_load_dwordx4 v{2+i}, s[12:15], s30 offen lds")
        for i in range(2):
            e(f"s_add_u32 m0, s32, {b*32768 + 16384 + i*1024}")
            e(f"s_nop 0")
            e(f"buffer_load_dwordx4 v{6+i}, s[16:19], s31 offen lds")
    dma(0); dma(1); dma(2)
    stamp(e, "k1", 1)
    e("""
    v_and_b32 v26, 31, v1
    v_lshlrev_b32 v26, 1, v26
    v_lshrrev_b32 v27, 5, v1
    v_lshlrev_b32 v27, 2, v27
    s_mov_b32 s47, 0x00020000
    """)
    M28 = (1 << 32) // 28 + 1; M112 = (1 << 32) // 112 + 1
    for slot in range(2):
        dst = 56 + slot
        rv = 240 + 8*slot
        if slot == 0:
            e(f"""
            s_sub_u32 s35, s34, 1568
            s_cmp_lt_u32 s34, 1568
            s_cselect_b32 s48, s34, s35
            s_cselect_b32 s44, s38, s36
            s_cselect_b32 s45, s39, s37
            s_cselect_b32 s46, {D*F*2}, {D*D*2}
            s_cselect_b32 s49, 3584, 896
            s_cselect_b32 s50, {W3F}, {W2F}
            s_mul_hi_u32 s62, s48, {M28}
            s_mul_i32 s63, s62, 28
            s_sub_u32 s63, s48, s63
            s_lshl_b32 s58, s63, 4
            s_mov_b32 s59, 0
            s_cmp_ge_u32 s34, 1960
            """)
        else:
            e(f"""
            s_mul_hi_u32 s62, s34, {M112}
            s_mul_i32 s63, s62, 112
            s_sub_u32 s63, s34, s63
            s_lshl_b32 s58, s63, 4
            s_sub_u32 s35, s34, 1568
            s_lshr_b32 s55, s35, 5
            s_and_b32 s63, s35, 31
            s_lshr_b32 s64, s63, 1
            s_mul_i32 s64, s64, 28
            s_and_b32 s63, s63, 1
            s_lshl_b32 s65, s63, 4
            s_add_u32 s64, s64, s65
            s_lshl_b32 s63, s63, 30
            s_cmp_lt_u32 s34, 1568
            s_cselect_b32 s48, s34, s35
            s_cselect_b32 s44, s40, s66
            s_cselect_b32 s45, s41, s67
            s_cselect_b32 s46, {D*F*2}, {D*D*2}
            s_mov_b32 s49, 896
            s_cselect_b32 s50, {W4F}, {WOF}
            s_cselect_b32 s62, s62, s55
            s_cselect_b32 s58, s58, s64
            s_cselect_b32 s59, 0, s63
            s_cmp_ge_u32 s34, 2016
            """)
        e(f"""
        s_cselect_b32 s46, 0, s46
        s_cselect_b32 s55, 1, 0
        s_and_b32 s45, s45, 0xffff
        s_lshl_b32 s35, s48, 10
        s_add_u32 s{dst}, s50, s35
        s_cmp_lg_u32 s55, 0
        s_cselect_b32 s{dst}, -1, s{dst}
        s_mul_i32 s58, s58, s49
        s_lshl_b32 s62, s62, 6
        s_add_u32 s58, s58, s62
        v_mul_lo_u32 v28, v27, s49
        v_add_u32 v28, v28, v26
        v_lshrrev_b32 v29, 2, v27
        v_mul_lo_u32 v29, v29, s59
        v_add_u32 v29, v29, v28
        """)
        for j in range(8):
            jrow = 8*(j >> 2) + (j & 3)
            va = 29 if j >= 4 else 28
            if jrow == 0:
                e(f"buffer_load_ushort v{rv + j}, v{va}, s[44:47], s58 offen")
            else:
                e(f"s_mul_i32 s35, s49, {jrow}")
                e(f"s_add_u32 s35, s35, s58")
                e(f"buffer_load_ushort v{rv + j}, v{va}, s[44:47], s35 offen")
    e("""
    v_lshrrev_b32 v20, 5, v1            ; hh
    v_bfe_u32 v21, v1, 2, 2             ; (l>>2)&3
    v_bfe_u32 v22, v1, 4, 1
    s_lshl_b32 s35, s52, 2
    v_add_u32 v22, s35, v22
    v_lshlrev_b32 v22, 11, v22
    v_and_b32 v23, 15, v1
    v_lshl_add_u32 v22, v23, 6, v22
    v_xor_b32 v23, v20, v21
    v_lshl_add_u32 v10, v23, 4, v22
    v_xor_b32 v23, 2, v23
    v_lshl_add_u32 v11, v23, 4, v22
    v_add_u32 v12, 0x10000, v10
    v_add_u32 v13, 0x10000, v11
    v_lshl_add_u32 v22, v20, 3, v21
    v_lshlrev_b32 v22, 8, v22
    v_bfe_u32 v23, v1, 4, 1
    v_lshlrev_b32 v23, 5, v23
    v_and_b32 v24, 3, v1
    v_lshl_add_u32 v23, v24, 3, v23
    v_lshl_add_u32 v23, v21, 6, v23
    s_mul_i32 s35, s53, s29
    v_add_u32 v24, s35, v23
    v_and_b32 v24, 255, v24
    v_add_u32 v14, v22, v24
    v_add_u32 v15, 0x10000, v14
    v_mov_b32 v18, 0x3f803f80
    """)
    for r in range(20, 27):
        e(f"v_mov_b32 v{r}, 0")

    def reads(c, s):
        P = s & 1
        base = (c % 4) * 32768
        hi = 1 if base >= 65536 else 0
        bm = base - 65536*hi
        fr = 32 + 12*P
        for b in range(2):
            e(f"ds_read_b128 v[{fr+4*b}:{fr+4*b+3}], v{10 + (s&1) + 2*hi} offset:{bm + b*4096 + (s>>1)*1024}")
        for u in range(2):
            e(f"ds_read_b64_tr_b16 v[{fr+8+2*u}:{fr+8+2*u+1}], v{14+hi} offset:{bm + 16384 + (16*s+4*u)*256}")
    extra = (16, 16, 0, 0, 0, 0)
    e("s_waitcnt vmcnt(24)")
    e("s_barrier")
    stamp(e, "k1", 2)
    reads(0, 0)
    e("""
    s_cmp_ge_u32 s25, 12
    s_cbranch_scc1 K1_LOOP_H
    s_cmp_ge_u32 s25, 8
    s_cbranch_scc1 K1_LOOP_V
    """)
    def qkv_dest():
        e(f"""
        s_lshl_b32 s49, s25, 19
        s_lshl_b32 s50, s53, 17
        s_add_u32 s49, s49, s50
        s_lshl_b32 s50, s24, 13
        s_add_u32 s49, s49, s50
        s_lshl_b32 s50, s52, 12
        s_add_u32 s49, s49, s50
        v_lshlrev_b32 v2, 4, v1
        """)
    gemm_loop(e, 'QK', dma, reads, 4, "K1Q", extra=extra)
    stamp(e, "k1", 3)
    scale = DH ** -0.5 * LOG2E
    e(f"""
    s_cmp_ge_u32 s25, 4
    s_cselect_b32 s35, 1.0, 0x{f2u(scale):08x}
    s_cselect_b32 s48, 0x3f80, 0
    """)
    qkv_dest()
    e("""
    v_mov_b32 v3, s48
    s_nop 7
    """)
    for b in range(2):
        acc = 64 + 16*b
        for r in range(16):
            e(f"v_mul_f32 v{acc+r}, s35, v{acc+r}")
        for i in range(8):
            e(f"v_cvt_pk_bf16_f32 v{32+i}, v{acc+2*i}, v{acc+2*i+1}")
        e(f"v_cndmask_b32 v38, v38, v3, s[60:61]")
        e(f"v_cndmask_b32 v39, v39, 0, s[60:61]")
        e(f"s_add_u32 s50, s49, {b*2048}")
        e(f"buffer_store_dwordx4 v[32:35], v2, s[20:23], s50 offen")
        e(f"buffer_store_dwordx4 v[36:39], v2, s[20:23], s50 offen offset:1024")
        e("s_nop 1")
    e("s_branch K1_RSTORE")
    e("K1_LOOP_V:")
    gemm_loop(e, 'V', dma, reads, 4, "K1V", extra=extra)
    stamp(e, "k1", 3)
    qkv_dest()
    e(f"""
    v_and_b32 v3, 31, v1
    v_cmp_le_u32 s[62:63], 28, v3
    v_cmp_eq_u32 vcc, 28, v3
    s_nop 1
    v_cndmask_b32 v3, 0, v18, vcc
    s_nop 7
    """)
    for b in range(2):
        acc = 64 + 16*b
        for i in range(8):
            e(f"v_cvt_pk_bf16_f32 v{32+i}, v{acc+2*i}, v{acc+2*i+1}")
        for i in range(8):
            e(f"v_cndmask_b32 v{32+i}, v{32+i}, v3, s[62:63]")
        e(f"s_add_u32 s50, s49, {b*2048}")
        e(f"buffer_store_dwordx4 v[32:35], v2, s[20:23], s50 offen")
        e(f"buffer_store_dwordx4 v[36:39], v2, s[20:23], s50 offen offset:1024")
        e("s_nop 1")
    e("s_branch K1_RSTORE")
    e("K1_LOOP_H:")
    gemm_loop(e, 'H', dma, reads, 4, "K1H", gwreg=GW, extra=extra)
    stamp(e, "k1", 3)
    e(f"""
    s_cmp_eq_u32 s54, 0
    s_cbranch_scc1 K1_NOGATE
    v_mov_b32 v32, v25
    v_mov_b32 v33, v26
    v_mov_b32 v34, v25
    v_mov_b32 v35, v26
    s_nop 1
    v_permlane32_swap_b32 v32, v34
    v_permlane32_swap_b32 v33, v35
    v_add_f32 v32, v32, v34
    v_add_f32 v33, v33, v35
    v_mul_f32 v32, 0x{f2u(-LOG2E):08x}, v32
    v_mul_f32 v33, 0x{f2u(-LOG2E):08x}, v33
    v_exp_f32 v32, v32
    v_exp_f32 v33, v33
    v_and_b32 v34, 31, v1
    v_add_f32 v32, 1.0, v32
    v_add_f32 v33, 1.0, v33
    v_rcp_f32 v32, v32
    v_rcp_f32 v33, v33
    v_lshlrev_b32 v34, 2, v34
    s_lshl_b32 s35, s24, 9
    s_lshl_b32 s36, s52, 8
    s_add_u32 s35, s35, s36
    s_add_u32 s35, s35, {GATE}
    buffer_store_dword v32, v34, s[20:23], s35 offen
    buffer_store_dword v33, v34, s[20:23], s35 offen offset:128
    K1_NOGATE:
    """)
    ln_epilogue(e, 3*32768)
    e(f"""
    s_sub_u32 s48, s25, 12
    s_lshl_b32 s48, s48, 2
    s_add_u32 s48, s48, s53
    s_lshl_b32 s49, s48, 11
    s_lshl_b32 s50, s24, 2
    s_lshl_b32 s35, s52, 1
    s_add_u32 s50, s50, s35
    s_mul_i32 s50, s50, 28672
    s_add_u32 s49, s49, s50
    s_add_u32 s49, s49, {HF}
    v_lshlrev_b32 v2, 4, v1
    s_cmp_ge_u32 s48, 14
    s_cbranch_scc1 K1_RSTORE
    """)
    ln_gelu_store(e, "s49", 28672)
    e("K1_RSTORE:")
    stamp(e, "k1", 4)
    e("v_lshlrev_b32 v2, 4, v1")
    for slot in range(2):
        rv = 240 + 8*slot
        e(f"s_cmp_eq_u32 s{56+slot}, -1")
        e(f"s_cbranch_scc1 K1_RS{slot}")
        for i in range(4):
            e(f"v_lshl_or_b32 v{rv+i}, v{rv+2*i+1}, 16, v{rv+2*i}")
        e(f"buffer_store_dwordx4 v[{rv}:{rv+3}], v2, s[20:23], s{56+slot} offen")
        e(f"K1_RS{slot}:")
    stamp(e, "k1", 5)
    stamp_flush(e, "k1", 6, 0)
    e("K1_END:")
    e("s_endpgm")
    kernel_desc(e, name, 256)
```

```python
import math, struct, re

S = 2048; D = 448; H = 16; DH = 28; F = 1792
MB = 1 << 20
QF = 0; KF = 2*MB; VF = 4*MB; HF = 6*MB; XN1 = 8*MB; X1 = 10*MB; MID = 12*MB; OF = 20*MB
W2F = 22*MB; W3F = 23*MB; W4F = 25*MB; WOF = 27*MB; GATE = 28*MB
WS_BYTES = 268435456

def f2u(x):
    return struct.unpack("<I", struct.pack("<f", x))[0]

class Asm:
    def __init__(self):
        self.lines = []
    def __call__(self, s):
        for l in s.split("\n"):
            l = l.strip()
            m = re.match(r"s_cselect_b32 (s\d+), (0x[0-9a-f]+|\d+), (0x[0-9a-f]+|\d+)\s*(;.*)?$", l)
            if m and int(m.group(2), 0) > 64 and int(m.group(3), 0) > 64:
                self.lines.append(f"    s_mov_b32 {m.group(1)}, {m.group(3)}")
                self.lines.append(f"    s_cselect_b32 {m.group(1)}, {m.group(2)}, {m.group(1)}")
                continue
            if l:
                if l.endswith(":") or l.startswith("."):
                    self.lines.append(l)
                else:
                    self.lines.append("    " + l)
    def text(self):
        return "\n".join(self.lines) + "\n"

def kernel_header(e, name):
    e(f".text\n.globl {name}\n.p2align 8\n.type {name},@function\n{name}:")

def kernel_desc(e, name, vgpr, sgpr=102):
    acc = (vgpr + 3) // 4 * 4
    e(f""".section .rodata,"a"
.p2align 6
.amdhsa_kernel {name}""")
    e.lines += [f"  .amdhsa_next_free_vgpr {vgpr}", f"  .amdhsa_next_free_sgpr {sgpr}", f"  .amdhsa_accum_offset {acc}",
                "  .amdhsa_group_segment_fixed_size 0", "  .amdhsa_kernarg_size 96", "  .amdhsa_user_sgpr_count 2",
                "  .amdhsa_user_sgpr_kernarg_segment_ptr 1", "  .amdhsa_system_sgpr_workgroup_id_x 1"]
    e(".end_amdhsa_kernel")

def srd(e, d, lo, hi, nbytes):
    e(f"s_mov_b32 s{d}, s{lo}")
    e(f"s_and_b32 s{d+1}, s{hi}, 0xffff")
    e(f"s_mov_b32 s{d+2}, {nbytes}")
    e(f"s_mov_b32 s{d+3}, 0x00020000")

LOG2E = math.log2(math.e)
GC1 = -2.0 * LOG2E * math.sqrt(2.0 / math.pi)
GC2 = GC1 * 0.044715

def gelu_block(e, regs, tmp, vc2):
    n = len(regs)
    for r, t in zip(regs, tmp):
        e(f"v_mul_f32 v{t}, v{r}, v{r}")
    for r, t in zip(regs, tmp):
        e(f"v_fmaak_f32 v{t}, v{vc2}, v{t}, 0x{f2u(GC1):08x}")
    for r, t in zip(regs, tmp):
        e(f"v_mul_f32 v{t}, v{t}, v{r}")
    for r, t in zip(regs, tmp):
        e(f"v_exp_f32 v{t}, v{t}")
    for r, t in zip(regs, tmp):
        e(f"v_add_f32 v{t}, 1.0, v{t}")
    for r, t in zip(regs, tmp):
        e(f"v_rcp_f32 v{t}, v{t}")
    for r, t in zip(regs, tmp):
        e(f"v_mul_f32 v{r}, v{r}, v{t}")

import os
DIAG = os.environ.get("DIAG", "")
DBGOFF = 40*MB
def stamp(e, kern, i):
    if kern in DIAG:
        e(f"s_memtime s[{70+2*i}:{71+2*i}]")
        if i == 0:
            e("s_memrealtime s[94:95]")
def stamp_flush(e, kern, n, kidx):
    if kern not in DIAG: return
    e("s_waitcnt lgkmcnt(0) vmcnt(0)")
    e("s_memrealtime s[96:97]")
    e("s_waitcnt lgkmcnt(0)")
    e(f"s_lshl_b32 s68, s2, 3")
    e(f"s_add_u32 s68, s68, s26")
    e(f"s_lshl_b32 s68, s68, 6")
    e(f"s_add_u32 s68, s68, {DBGOFF + kidx*MB}")
    e("v_mov_b32 v0, 0")
    for i in range(n):
        e(f"v_mov_b32 v1, s{70+2*i}")
        e(f"buffer_store_dword v1, v0, s[20:23], s68 offen offset:{4*i}")
    e("v_mov_b32 v1, s94")
    e(f"buffer_store_dword v1, v0, s[20:23], s68 offen offset:48")
    e("v_mov_b32 v1, s96")
    e(f"buffer_store_dword v1, v0, s[20:23], s68 offen offset:52")
    e("s_getreg_b32 s69, hwreg(HW_REG_HW_ID)")
    e("v_mov_b32 v1, s69")
    e(f"buffer_store_dword v1, v0, s[20:23], s68 offen offset:56")
    e("s_getreg_b32 s69, hwreg(HW_REG_XCC_ID)")
    e("v_mov_b32 v1, s69")
    e(f"buffer_store_dword v1, v0, s[20:23], s68 offen offset:60")

def gelu_pk(e, regs, tmp, vc):
    n = len(regs)
    P = [(regs[i], tmp[i]) for i in range(0, n, 2)]
    for r, t in P:
        e(f"v_pk_mul_f32 v[{t}:{t+1}], v[{r}:{r+1}], v[{r}:{r+1}]")
    for r, t in P:
        e(f"v_pk_fma_f32 v[{t}:{t+1}], v[{t}:{t+1}], v[{vc}:{vc+1}], v[{vc+2}:{vc+3}]")
    for r, t in P:
        e(f"v_pk_mul_f32 v[{t}:{t+1}], v[{t}:{t+1}], v[{r}:{r+1}]")
    for t in tmp:
        e(f"v_exp_f32 v{t}, v{t}")
    for r, t in P:
        e(f"v_pk_add_f32 v[{t}:{t+1}], v[{t}:{t+1}], 1.0 op_sel_hi:[1,0]")
    for t in tmp:
        e(f"v_rcp_f32 v{t}, v{t}")
    for r, t in P:
        e(f"v_pk_mul_f32 v[{r}:{r+1}], v[{r}:{r+1}], v[{t}:{t+1}]")

def gelu_consts(e, vc):
    e(f"v_mov_b32 v{vc}, 0x{f2u(GC2):08x}")
    e(f"v_mov_b32 v{vc+1}, 0x{f2u(GC2):08x}")
    e(f"v_mov_b32 v{vc+2}, 0x{f2u(GC1):08x}")
    e(f"v_mov_b32 v{vc+3}, 0x{f2u(GC1):08x}")

def gemm_loop(e, kind, dma, reads, nreads, tag, gwreg=None, extra=(0,0,0,0,0,0)):
    for c in range(7):
        for s in range(4):
            P = s & 1
            fr = 32 + 12*P
            if s < 3:
                e(f"s_setprio {2-s}")
                reads(c, s+1)
                e(f"s_waitcnt lgkmcnt({nreads})")
            else:
                if c < 6:
                    out = min(6, c+2) - (c+1)
                    e(f"s_waitcnt vmcnt({4*out + extra[c]})")
                    e("s_barrier")
                    e("s_setprio 3")
                    if c + 3 <= 6:
                        dma(c+3)
                    reads(c+1, 0)
                    e(f"s_waitcnt lgkmcnt({nreads})")
                else:
                    e("s_waitcnt lgkmcnt(0)")
            for b in range(2):
                acc = 64 + 16*b
                xf = fr + 4*b; wf = fr + 8
                cc = "0" if (c == 0 and s == 0) else f"v[{acc}:{acc+15}]"
                if kind == 'V':
                    e(f"v_mfma_f32_32x32x16_bf16 v[{acc}:{acc+15}], v[{xf}:{xf+3}], v[{wf}:{wf+3}], {cc}")
                else:
                    e(f"v_mfma_f32_32x32x16_bf16 v[{acc}:{acc+15}], v[{wf}:{wf+3}], v[{xf}:{xf+3}], {cc}")
            if kind == 'H':
                lab = f"{tag}_S{c}_{s}"
                e(f"s_cmp_lg_u32 s53, {s}")
                e(f"s_cbranch_scc1 {lab}a")
                for b in range(2):
                    xf = fr + 4*b
                    for i in range(4):
                        e(f"v_dot2_f32_bf16 v{20+b}, v{xf+i}, v18, v{20+b}")
                        e(f"v_dot2_f32_bf16 v{22+b}, v{xf+i}, v{xf+i}, v{22+b}")
                e(f"{lab}a:")
                e(f"s_cmp_lg_u32 s52, {s&1}")
                e(f"s_cbranch_scc1 {lab}b")
                for i in range(4):
                    e(f"v_dot2_f32_bf16 v24, v{fr+8+i}, v18, v24")
                e(f"{lab}b:")
                if gwreg is not None:
                    e(f"s_cmp_eq_u32 s54, 0")
                    e(f"s_cbranch_scc1 {lab}c")
                    g = gwreg + 4*(4*c+s)
                    for b in range(2):
                        xf = fr + 4*b
                        for i in range(4):
                            e(f"v_dot2_f32_bf16 v{25+b}, v{xf+i}, v{g+i}, v{25+b}")
                    e(f"{lab}c:")

def ln_epilogue(e, ldsbase):
    for r in range(20, 25):
        e(f"v_mov_b32 v{r+6}, v{r}")
    e("s_nop 1")
    for r in range(20, 25):
        e(f"v_permlane32_swap_b32 v{r}, v{r+6}")
    for r in range(20, 25):
        e(f"v_add_f32 v{r}, v{r}, v{r+6}")
    e(f"""
    v_and_b32 v2, 31, v1
    v_lshlrev_b32 v2, 2, v2
    s_lshl_b32 s35, s52, 11
    s_lshl_b32 s36, s53, 9
    s_add_u32 s36, s36, s35
    s_add_u32 s36, s36, {ldsbase}
    v_add_u32 v3, s36, v2
    ds_write_b32 v3, v20
    ds_write_b32 v3, v21 offset:128
    ds_write_b32 v3, v22 offset:256
    ds_write_b32 v3, v23 offset:384
    s_lshl_b32 s36, s53, 8
    s_lshl_b32 s37, s52, 7
    s_add_u32 s37, s37, s36
    s_add_u32 s37, s37, {ldsbase + 4096}
    v_add_u32 v3, s37, v2
    ds_write_b32 v3, v24
    s_add_u32 s35, s35, {ldsbase}
    v_add_u32 v3, s35, v2
    v_lshrrev_b32 v4, 5, v1
    v_lshlrev_b32 v4, 4, v4
    s_add_u32 s36, s36, {ldsbase + 4096}
    v_add_u32 v4, s36, v4
    s_waitcnt lgkmcnt(0)
    s_barrier
    """)
    for q in range(4):
        for v in range(4):
            e(f"ds_read_b32 v{32+4*q+v}, v3 offset:{q*512 + v*128}")
    for q in range(4):
        e(f"ds_read_b128 v[{96+4*q}:{99+4*q}], v4 offset:{q*32}")
        e(f"ds_read_b128 v[{112+4*q}:{115+4*q}], v4 offset:{128 + q*32}")
    e("s_waitcnt lgkmcnt(8)")
    for v in range(4):
        e(f"v_add_f32 v{20+v}, v{32+v}, v{36+v}")
        e(f"v_add_f32 v{40+v}, v{40+v}, v{44+v}")
    for v in range(4):
        e(f"v_add_f32 v{20+v}, v{20+v}, v{40+v}")
    e(f"""
    v_mul_f32 v20, 0x{f2u(1.0/448):08x}, v20
    v_mul_f32 v21, 0x{f2u(1.0/448):08x}, v21
    v_mul_f32 v22, 0x{f2u(1.0/448):08x}, v22
    v_mul_f32 v23, 0x{f2u(1.0/448):08x}, v23
    v_fma_f32 v22, -v20, v20, v22
    v_fma_f32 v23, -v21, v21, v23
    v_max_f32 v22, 0, v22
    v_max_f32 v23, 0, v23
    v_add_f32 v22, 0x{f2u(1e-5):08x}, v22
    v_add_f32 v23, 0x{f2u(1e-5):08x}, v23
    v_rsq_f32 v22, v22
    v_rsq_f32 v23, v23
    s_waitcnt lgkmcnt(0)
    """)
    for r in range(16):
        e(f"v_add_f32 v{96+r}, v{96+r}, v{112+r}")

def ln_gelu_store(e, sdst, bstride):
    gelu_consts(e, 28)
    for b in range(2):
        acc = 64 + 16*b
        for r in range(16):
            e(f"v_fma_f32 v{acc+r}, -v{20+b}, v{96+r}, v{acc+r}")
        for r in range(16):
            e(f"v_mul_f32 v{acc+r}, v{22+b}, v{acc+r}")
        gelu_pk(e, list(range(acc, acc+16)), list(range(40, 56)), 28)
        for i in range(8):
            e(f"v_cvt_pk_bf16_f32 v{32+i}, v{acc+2*i}, v{acc+2*i+1}")
        e(f"s_add_u32 s50, {sdst}, {b*bstride}")
        e(f"buffer_store_dwordx4 v[32:35], v2, s[20:23], s50 offen")
        e(f"buffer_store_dwordx4 v[36:39], v2, s[20:23], s50 offen offset:1024")
        e("s_nop 1")


def touch(e, sbase, nbytes, vaddr, vdst, stmp="s35", srdr="s[20:23]"):
    n = (nbytes + 8191) // 8192
    for i in range(n):
        if i == 0:
            e(f"buffer_load_dword v{vdst}, v{vaddr}, {srdr}, {sbase} offen")
        else:
            e(f"s_add_u32 {stmp}, {sbase}, {8192*i}")
            e(f"buffer_load_dword v{vdst}, v{vaddr}, {srdr}, {stmp} offen")
    return n
```

```python
from common import *

def gen_k1(e):
    name = "k1_kernel"
    kernel_header(e, name)
    e("""
    s_cmp_ge_u32 s2, 256
    s_cbranch_scc1 K1_END
    s_load_dwordx4 s[4:7], s[0:1], 0
    s_load_dwordx2 s[8:9], s[0:1], 32
    s_load_dwordx2 s[10:11], s[0:1], 88
    s_load_dwordx4 s[36:39], s[0:1], 40
    s_load_dwordx4 s[40:43], s[0:1], 56     ; w4, gate_w
    s_load_dwordx2 s[66:67], s[0:1], 16     ; wo
    v_and_b32 v1, 63, v0
    v_lshrrev_b32 v2, 6, v0
    s_nop 0
    v_readfirstlane_b32 s26, v2
    s_and_b32 s24, s2, 15
    s_lshr_b32 s25, s2, 4
    s_add_u32 s25, s25, 12
    s_and_b32 s25, s25, 15
    s_lshl_b32 s34, s2, 3
    s_add_u32 s34, s34, s26
    s_lshl_b32 s32, s26, 11             ; w*2048
    s_and_b32 s52, s26, 1               ; th
    s_lshr_b32 s53, s26, 1              ; nq
    s_mov_b32 s60, 0
    s_mov_b32 s61, -1
    s_cmp_ge_u32 s25, 12
    s_cselect_b32 s27, 896, 2688
    s_cselect_b32 s29, 64, 56
    s_mul_i32 s28, s25, 224
    s_sub_u32 s35, s25, 12
    s_lshl_b32 s35, s35, 8
    s_cmp_ge_u32 s25, 12
    s_cselect_b32 s28, s35, s28
    s_lshl_b32 s33, s27, 6
    """)
    e("""
    v_lshrrev_b32 v20, 2, v1
    v_and_b32 v21, 3, v1
    v_bfe_u32 v22, v1, 4, 2
    v_xor_b32 v21, v21, v22
    s_lshl_b32 s35, s24, 7
    s_lshl_b32 s48, s26, 4
    s_add_u32 s35, s35, s48             ; tb*128 + 16w
    v_add_u32 v20, s35, v20
    v_mul_u32_u24 v20, 896, v20
    v_lshl_add_u32 v2, v21, 4, v20
    v_add_u32 v3, 64, v2
    v_lshrrev_b32 v20, 4, v1            ; r4
    v_lshlrev_b32 v21, 2, v20
    v_sub_u32 v21, v1, v21
    v_and_b32 v21, 15, v21
    s_lshl_b32 s35, s26, 3
    v_add_u32 v20, s35, v20             ; 8w + r4
    v_mul_lo_u32 v20, v20, s27
    v_lshl_add_u32 v20, v21, 4, v20
    v_add_u32 v6, s28, v20
    s_lshl_b32 s35, s27, 2
    v_add_u32 v7, s35, v6
    s_waitcnt lgkmcnt(0)
    """)
    srd(e, 12, 4, 5, S*D*2)
    srd(e, 20, 10, 11, WS_BYTES)
    stamp(e, "k1", 0)
    e("""
    s_cmp_ge_u32 s25, 12
    s_cselect_b32 s16, s8, s6
    s_cselect_b32 s17, s9, s7
    s_cselect_b32 s18, 401408, 1204224
    s_and_b32 s17, s17, 0xffff
    s_mov_b32 s19, 0x00020000
    """)
    GW = 128
    e(f"""
    s_mov_b32 s54, 0
    s_cmp_lg_u32 s25, 15
    s_cbranch_scc1 K1_NOGW
    s_cmp_lg_u32 s53, 2
    s_cbranch_scc1 K1_NOGW
    s_mov_b32 s54, 1
    """)
    srd(e, 44, 42, 43, D*2)
    e("""
    v_lshrrev_b32 v20, 5, v1
    v_lshlrev_b32 v20, 4, v20
    """)
    for ks in range(28):
        e(f"buffer_load_dwordx4 v[{GW+4*ks}:{GW+4*ks+3}], v20, s[44:47], 0 offen offset:{32*ks}")
    e("K1_NOGW:")

    def dma(c):
        b = c % 4
        e(f"s_mov_b32 s30, {c*128}")
        e(f"s_mul_i32 s31, s33, {c}")
        for i in range(2):
            e(f"s_add_u32 m0, s32, {b*32768 + i*1024}")
            e(f"s_nop 0")
            e(f"buffer_load_dwordx4 v{2+i}, s[12:15], s30 offen lds")
        for i in range(2):
            e(f"s_add_u32 m0, s32, {b*32768 + 16384 + i*1024}")
            e(f"s_nop 0")
            e(f"buffer_load_dwordx4 v{6+i}, s[16:19], s31 offen lds")
    dma(0); dma(1); dma(2)
    stamp(e, "k1", 1)
    e("""
    v_and_b32 v26, 31, v1
    v_lshlrev_b32 v26, 1, v26
    v_lshrrev_b32 v27, 5, v1
    v_lshlrev_b32 v27, 2, v27
    s_mov_b32 s47, 0x00020000
    """)
    M28 = (1 << 32) // 28 + 1; M112 = (1 << 32) // 112 + 1
    for slot in range(2):
        dst = 56 + slot
        rv = 240 + 8*slot
        if slot == 0:
            e(f"""
            s_sub_u32 s35, s34, 1568
            s_cmp_lt_u32 s34, 1568
            s_cselect_b32 s48, s34, s35
            s_cselect_b32 s44, s38, s36
            s_cselect_b32 s45, s39, s37
            s_cselect_b32 s46, {D*F*2}, {D*D*2}
            s_cselect_b32 s49, 3584, 896
            s_cselect_b32 s50, {W3F}, {W2F}
            s_mul_hi_u32 s62, s48, {M28}
            s_mul_i32 s63, s62, 28
            s_sub_u32 s63, s48, s63
            s_lshl_b32 s58, s63, 4
            s_mov_b32 s59, 0
            s_cmp_ge_u32 s34, 1960
            """)
        else:
            e(f"""
            s_mul_hi_u32 s62, s34, {M112}
            s_mul_i32 s63, s62, 112
            s_sub_u32 s63, s34, s63
            s_lshl_b32 s58, s63, 4
            s_sub_u32 s35, s34, 1568
            s_lshr_b32 s55, s35, 5
            s_and_b32 s63, s35, 31
            s_lshr_b32 s64, s63, 1
            s_mul_i32 s64, s64, 28
            s_and_b32 s63, s63, 1
            s_lshl_b32 s65, s63, 4
            s_add_u32 s64, s64, s65
            s_lshl_b32 s63, s63, 30
            s_cmp_lt_u32 s34, 1568
            s_cselect_b32 s48, s34, s35
            s_cselect_b32 s44, s40, s66
            s_cselect_b32 s45, s41, s67
            s_cselect_b32 s46, {D*F*2}, {D*D*2}
            s_mov_b32 s49, 896
            s_cselect_b32 s50, {W4F}, {WOF}
            s_cselect_b32 s62, s62, s55
            s_cselect_b32 s58, s58, s64
            s_cselect_b32 s59, 0, s63
            s_cmp_ge_u32 s34, 2016
            """)
        e(f"""
        s_cselect_b32 s46, 0, s46
        s_cselect_b32 s55, 1, 0
        s_and_b32 s45, s45, 0xffff
        s_lshl_b32 s35, s48, 10
        s_add_u32 s{dst}, s50, s35
        s_cmp_lg_u32 s55, 0
        s_cselect_b32 s{dst}, -1, s{dst}
        s_mul_i32 s58, s58, s49
        s_lshl_b32 s62, s62, 6
        s_add_u32 s58, s58, s62
        v_mul_lo_u32 v28, v27, s49
        v_add_u32 v28, v28, v26
        v_lshrrev_b32 v29, 2, v27
        v_mul_lo_u32 v29, v29, s59
        v_add_u32 v29, v29, v28
        """)
        for j in range(8):
            jrow = 8*(j >> 2) + (j & 3)
            va = 29 if j >= 4 else 28
            if jrow == 0:
                e(f"buffer_load_ushort v{rv + j}, v{va}, s[44:47], s58 offen")
            else:
                e(f"s_mul_i32 s35, s49, {jrow}")
                e(f"s_add_u32 s35, s35, s58")
                e(f"buffer_load_ushort v{rv + j}, v{va}, s[44:47], s35 offen")
    e("""
    v_lshrrev_b32 v20, 5, v1            ; hh
    v_bfe_u32 v21, v1, 2, 2             ; (l>>2)&3
    v_bfe_u32 v22, v1, 4, 1
    s_lshl_b32 s35, s52, 2
    v_add_u32 v22, s35, v22
    v_lshlrev_b32 v22, 11, v22
    v_and_b32 v23, 15, v1
    v_lshl_add_u32 v22, v23, 6, v22
    v_xor_b32 v23, v20, v21
    v_lshl_add_u32 v10, v23, 4, v22
    v_xor_b32 v23, 2, v23
    v_lshl_add_u32 v11, v23, 4, v22
    v_add_u32 v12, 0x10000, v10
    v_add_u32 v13, 0x10000, v11
    v_lshl_add_u32 v22, v20, 3, v21
    v_lshlrev_b32 v22, 8, v22
    v_bfe_u32 v23, v1, 4, 1
    v_lshlrev_b32 v23, 5, v23
    v_and_b32 v24, 3, v1
    v_lshl_add_u32 v23, v24, 3, v23
    v_lshl_add_u32 v23, v21, 6, v23
    s_mul_i32 s35, s53, s29
    v_add_u32 v24, s35, v23
    v_and_b32 v24, 255, v24
    v_add_u32 v14, v22, v24
    v_add_u32 v15, 0x10000, v14
    v_mov_b32 v18, 0x3f803f80
    """)
    for r in range(20, 27):
        e(f"v_mov_b32 v{r}, 0")

    def reads(c, s):
        P = s & 1
        base = (c % 4) * 32768
        hi = 1 if base >= 65536 else 0
        bm = base - 65536*hi
        fr = 32 + 12*P
        for b in range(2):
            e(f"ds_read_b128 v[{fr+4*b}:{fr+4*b+3}], v{10 + (s&1) + 2*hi} offset:{bm + b*4096 + (s>>1)*1024}")
        for u in range(2):
            e(f"ds_read_b64_tr_b16 v[{fr+8+2*u}:{fr+8+2*u+1}], v{14+hi} offset:{bm + 16384 + (16*s+4*u)*256}")
    extra = (16, 16, 0, 0, 0, 0)
    e("s_waitcnt vmcnt(24)")
    e("s_barrier")
    stamp(e, "k1", 2)
    reads(0, 0)
    e("""
    s_cmp_ge_u32 s25, 12
    s_cbranch_scc1 K1_LOOP_H
    s_cmp_ge_u32 s25, 8
    s_cbranch_scc1 K1_LOOP_V
    """)
    def qkv_dest():
        e(f"""
        s_lshl_b32 s49, s25, 19
        s_lshl_b32 s50, s53, 17
        s_add_u32 s49, s49, s50
        s_lshl_b32 s50, s24, 13
        s_add_u32 s49, s49, s50
        s_lshl_b32 s50, s52, 12
        s_add_u32 s49, s49, s50
        v_lshlrev_b32 v2, 4, v1
        """)
    gemm_loop(e, 'QK', dma, reads, 4, "K1Q", extra=extra)
    stamp(e, "k1", 3)
    scale = DH ** -0.5 * LOG2E
    e(f"""
    s_cmp_ge_u32 s25, 4
    s_cselect_b32 s35, 1.0, 0x{f2u(scale):08x}
    s_cselect_b32 s48, 0x3f80, 0
    """)
    qkv_dest()
    e("""
    v_mov_b32 v3, s48
    s_nop 7
    """)
    for b in range(2):
        acc = 64 + 16*b
        for r in range(16):
            e(f"v_mul_f32 v{acc+r}, s35, v{acc+r}")
        for i in range(8):
            e(f"v_cvt_pk_bf16_f32 v{32+i}, v{acc+2*i}, v{acc+2*i+1}")
        e(f"v_cndmask_b32 v38, v38, v3, s[60:61]")
        e(f"v_cndmask_b32 v39, v39, 0, s[60:61]")
        e(f"s_add_u32 s50, s49, {b*2048}")
        e(f"buffer_store_dwordx4 v[32:35], v2, s[20:23], s50 offen")
        e(f"buffer_store_dwordx4 v[36:39], v2, s[20:23], s50 offen offset:1024")
        e("s_nop 1")
    e("s_branch K1_RSTORE")
    e("K1_LOOP_V:")
    gemm_loop(e, 'V', dma, reads, 4, "K1V", extra=extra)
    stamp(e, "k1", 3)
    qkv_dest()
    e(f"""
    v_and_b32 v3, 31, v1
    v_cmp_le_u32 s[62:63], 28, v3
    v_cmp_eq_u32 vcc, 28, v3
    s_nop 1
    v_cndmask_b32 v3, 0, v18, vcc
    s_nop 7
    """)
    for b in range(2):
        acc = 64 + 16*b
        for i in range(8):
            e(f"v_cvt_pk_bf16_f32 v{32+i}, v{acc+2*i}, v{acc+2*i+1}")
        for i in range(8):
            e(f"v_cndmask_b32 v{32+i}, v{32+i}, v3, s[62:63]")
        e(f"s_add_u32 s50, s49, {b*2048}")
        e(f"buffer_store_dwordx4 v[32:35], v2, s[20:23], s50 offen")
        e(f"buffer_store_dwordx4 v[36:39], v2, s[20:23], s50 offen offset:1024")
        e("s_nop 1")
    e("s_branch K1_RSTORE")
    e("K1_LOOP_H:")
    gemm_loop(e, 'H', dma, reads, 4, "K1H", gwreg=GW, extra=extra)
    stamp(e, "k1", 3)
    e(f"""
    s_cmp_eq_u32 s54, 0
    s_cbranch_scc1 K1_NOGATE
    v_mov_b32 v32, v25
    v_mov_b32 v33, v26
    v_mov_b32 v34, v25
    v_mov_b32 v35, v26
    s_nop 1
    v_permlane32_swap_b32 v32, v34
    v_permlane32_swap_b32 v33, v35
    v_add_f32 v32, v32, v34
    v_add_f32 v33, v33, v35
    v_mul_f32 v32, 0x{f2u(-LOG2E):08x}, v32
    v_mul_f32 v33, 0x{f2u(-LOG2E):08x}, v33
    v_exp_f32 v32, v32
    v_exp_f32 v33, v33
    v_and_b32 v34, 31, v1
    v_add_f32 v32, 1.0, v32
    v_add_f32 v33, 1.0, v33
    v_rcp_f32 v32, v32
    v_rcp_f32 v33, v33
    v_lshlrev_b32 v34, 2, v34
    s_lshl_b32 s35, s24, 9
    s_lshl_b32 s36, s52, 8
    s_add_u32 s35, s35, s36
    s_add_u32 s35, s35, {GATE}
    buffer_store_dword v32, v34, s[20:23], s35 offen
    buffer_store_dword v33, v34, s[20:23], s35 offen offset:128
    K1_NOGATE:
    """)
    ln_epilogue(e, 3*32768)
    e(f"""
    s_sub_u32 s48, s25, 12
    s_lshl_b32 s48, s48, 2
    s_add_u32 s48, s48, s53
    s_lshl_b32 s49, s48, 11
    s_lshl_b32 s50, s24, 2
    s_lshl_b32 s35, s52, 1
    s_add_u32 s50, s50, s35
    s_mul_i32 s50, s50, 28672
    s_add_u32 s49, s49, s50
    s_add_u32 s49, s49, {HF}
    v_lshlrev_b32 v2, 4, v1
    s_cmp_ge_u32 s48, 14
    s_cbranch_scc1 K1_RSTORE
    """)
    ln_gelu_store(e, "s49", 28672)
    e("K1_RSTORE:")
    e(f"""
    s_cmp_lg_u32 s34, 0
    s_cbranch_scc1 K1_NOZ
    v_lshlrev_b32 v2, 8, v1
    v_mov_b32 v3, 0
    s_mov_b32 s35, {31*MB}
    buffer_store_dword v3, v2, s[20:23], s35 offen
    K1_NOZ:
    """)
    stamp(e, "k1", 4)
    e("v_lshlrev_b32 v2, 4, v1")
    for slot in range(2):
        rv = 240 + 8*slot
        e(f"s_cmp_eq_u32 s{56+slot}, -1")
        e(f"s_cbranch_scc1 K1_RS{slot}")
        for i in range(4):
            e(f"v_lshl_or_b32 v{rv+i}, v{rv+2*i+1}, 16, v{rv+2*i}")
        e(f"buffer_store_dwordx4 v[{rv}:{rv+3}], v2, s[20:23], s{56+slot} offen")
        if slot == 0:
            e(f"""
            s_cmp_ge_u32 s34, 1568
            s_cbranch_scc1 K1_RS0
            v_mov_b32 v18, 0x3f803f80
            v_mov_b32 v4, 0
            v_dot2_f32_bf16 v4, v{rv}, v18, v4
            v_dot2_f32_bf16 v4, v{rv+1}, v18, v4
            v_dot2_f32_bf16 v4, v{rv+2}, v18, v4
            v_dot2_f32_bf16 v4, v{rv+3}, v18, v4
            s_nop 3
            v_mov_b32 v5, v4
            s_nop 1
            v_permlane32_swap_b32 v4, v5
            v_add_f32 v4, v4, v5
            v_and_b32 v5, 31, v1
            v_lshlrev_b32 v5, 2, v5
            s_lshl_b32 s35, s34, 7
            s_add_u32 s35, s35, {29*MB}
            buffer_store_dword v4, v5, s[20:23], s35 offen
            """)
        e(f"K1_RS{slot}:")
    stamp(e, "k1", 5)
    stamp_flush(e, "k1", 6, 0)
    e("K1_END:")
    e("s_endpgm")
    kernel_desc(e, name, 256)
```
